```python
import torch

def _softmax(x, axis=-1):
    return torch.softmax(x, dim=axis)
def _gelu(x):
    return torch.nn.functional.gelu(x, approximate="tanh")
def _silu(x):
    return torch.nn.functional.silu(x)
def _sigmoid(x):
    return torch.sigmoid(x)
def _layernorm(x, axis=-1, eps=1e-5):
    m = x.mean(dim=axis, keepdim=True)
    v = x.var(dim=axis, keepdim=True, unbiased=False)
    return (x - m) / torch.sqrt(v + eps)
def _scatter_add(tgt, idx, src, axis=0):
    return tgt.clone().index_add_(axis, idx, src)
def _segment_sum(src, seg, n):
    out = torch.zeros((n,) + src.shape[1:], dtype=src.dtype)
    return out.index_add_(0, seg, src)
def _pad(x, pw):
    flat = tuple(v for pair in reversed(pw) for v in pair)
    return torch.nn.functional.pad(x, flat)

kernel_name = 'concat_heads__sliding_local_dilated__mha_block__prompt'

def setup_inputs():

    _w = (lambda a: (lambda t: t.to(torch.bfloat16) if t.is_floating_point() else t)(torch.as_tensor(a)))
    def _A_setup():
        B, S, D = 1, 2048, 512
        return {
            "x": _w((lambda *s: torch.randn(*s, dtype=torch.bfloat16) * 0.4)(B, S, D)),
            "wqkv": _w((lambda *s: torch.randn(*s, dtype=torch.bfloat16) * 0.4)(D, 3 * D)),
            "wo": _w((lambda *s: torch.randn(*s, dtype=torch.bfloat16) * 0.05)(D, D)),
        }
    _A_in = _A_setup()

    def _B_setup():
        B, S, D, H = 1, 2048, 512, 32
        return {
            "x": _w((lambda *s: torch.randn(*s, dtype=torch.bfloat16) * 0.2)(B, S, D)),
            "wqkv": _w((lambda *s: torch.randn(*s, dtype=torch.bfloat16) * 0.4)(D, 3 * D)),
            "wo": _w((lambda *s: torch.randn(*s, dtype=torch.bfloat16) * 0.1)(D, D)),
        }
    _B_in = _B_setup()

    return {
        "A_x": _A_in["x"],
        "A_wqkv": _A_in["wqkv"],
        "A_wo": _A_in["wo"],
        "B_x": _B_in["x"],
        "B_wqkv": _B_in["wqkv"],
        "B_wo": _B_in["wo"],
    }

def reference(A_x, A_wqkv, A_wo, B_x, B_wqkv, B_wo):
    def _A_ref(x, wqkv, wo):
        B, S, D = x.shape
        H = 32; Dh = D // H
        W, dil = 8, 2
        qkv = (lambda x, *d: x.permute(*d))((x @ wqkv).reshape(B, S, 3, H, Dh), 2, 0, 3, 1, 4)
        q, k, v = qkv[0], qkv[1], qkv[2]
        scale = Dh ** -0.5
        pos = torch.arange(S)
        off = torch.arange(W) * dil
        idx = pos[:, None] - off[None, :]
        mask = idx >= 0
        idx_c = torch.where(mask, idx, 0).reshape(-1)
        kg = k[:, :, idx_c, :].reshape(B, H, S, W, Dh)
        vg = v[:, :, idx_c, :].reshape(B, H, S, W, Dh)
        logits = torch.einsum("bhsd,bhswd->bhsw", q, kg) * scale
        logits = torch.where(mask[None, None, :, :], logits, -1e9)
        attn = _softmax(logits, axis=-1)
        o = torch.einsum("bhsw,bhswd->bhsd", attn, vg)
        return (lambda x, *d: x.permute(*d))(o, 0, 2, 1, 3).reshape(B, S, D) @ wo

    def _B_ref(x, wqkv, wo):
        B, S, D = x.shape
        H = 32
        Dh = D // H
        qkv = (lambda x, *d: x.permute(*d))((x @ wqkv).reshape(B, S, 3, H, Dh), 2, 0, 3, 1, 4)
        q, k, v = qkv[0], qkv[1], qkv[2]
        scores = torch.einsum("bhqd,bhkd->bhqk", q, k) * (Dh ** -0.5)
        p = _softmax(scores, axis=-1)
        o = torch.einsum("bhqk,bhkd->bhqd", p, v)
        return (lambda x, *d: x.permute(*d))(o, 0, 2, 1, 3).reshape(B, S, D) @ wo

    a = _A_ref(A_x, A_wqkv, A_wo)
    b = _B_ref(B_x, B_wqkv, B_wo)
    return torch.concatenate([a, b], axis=-1)
```

```python
import re

TRANS = ("v_exp_", "v_log_", "v_rcp_", "v_rsq_", "v_sqrt_", "v_sin_", "v_cos_")


def _regs(tok):
    tok = tok.strip()
    m = re.fullmatch(r"([vsa])(\d+)", tok)
    if m:
        return [(m.group(1), int(m.group(2)))]
    m = re.fullmatch(r"([vsa])\[(\d+):(\d+)\]", tok)
    if m:
        return [(m.group(1), i) for i in range(int(m.group(2)), int(m.group(3)) + 1)]
    if tok in ("vcc", "vcc_lo", "vcc_hi"):
        return [("x", "vcc")]
    if tok in ("exec", "exec_lo", "exec_hi"):
        return [("x", "exec")]
    if tok == "m0":
        return [("x", "m0")]
    m = re.fullmatch(r"-?\|?([vs]\d+)\|?", tok)
    if m:
        return _regs(m.group(1))
    return []


class Ins:
    __slots__ = ("text", "op", "ops", "kind", "rd", "wr", "label", "target", "passes", "srcc", "d", "nstates", "lds", "widestore")

    def __init__(self, text):
        self.text = text
        self.label = None
        self.target = None
        self.passes = 0
        self.srcc = set()
        self.d = set()
        self.rd = set()
        self.wr = set()
        self.nstates = 1
        self.lds = False
        self.widestore = False
        t = text.split(";")[0].strip()
        if t.endswith(":"):
            self.kind = "label"
            self.label = t[:-1]
            self.op = ""
            self.nstates = 0
            return
        if not t:
            self.kind = "comment"
            self.op = ""
            self.nstates = 0
            return
        parts = t.split(None, 1)
        op = parts[0]
        self.op = op
        rest = parts[1] if len(parts) > 1 else ""
        ops = [o.strip() for o in rest.split(",")] if rest else []
        mods = []
        if ops:
            last = ops[-1].split()
            if last:
                ops[-1] = last[0]
                mods = last[1:]
        self.ops = ops
        R = lambda i: set(_regs(ops[i])) if i < len(ops) else set()
        allr = lambda a: set().union(*[set(_regs(o)) for o in ops[a:]]) if len(ops) > a else set()
        if op.startswith("v_mfma"):
            self.kind = "mfma"
            self.passes = 8 if "32x32" in op else 4
            self.wr = R(0)
            self.d = R(0)
            self.rd = R(1) | R(2) | R(3)
            self.srcc = R(3)
        elif op.startswith("v_"):
            self.kind = "valu"
            if op.startswith("v_cmp"):
                self.wr = R(0)
                self.rd = allr(1)
            elif op.startswith("v_permlane16_swap") or op.startswith("v_permlane32_swap"):
                self.wr = R(0) | R(1)
                self.rd = R(0) | R(1)
            elif op.startswith("v_readfirstlane") or op.startswith("v_readlane"):
                self.wr = R(0)
                self.rd = allr(1)
            elif op.startswith("v_cndmask"):
                self.wr = R(0)
                self.rd = allr(1)
                if len(ops) == 3:
                    self.rd |= {("x", "vcc")}
            elif op.startswith("v_add_co") or op.startswith("v_addc_co") or op.startswith("v_sub_co"):
                self.wr = R(0) | R(1)
                self.rd = allr(2)
            elif op.startswith("v_fmac") or op.startswith("v_pk_fmac") or op.startswith("v_mac") or op.startswith("v_writelane"):
                self.wr = R(0)
                self.rd = allr(0)
            else:
                self.wr = R(0)
                self.rd = allr(1)
        elif op.startswith("ds_"):
            self.kind = "ds"
            if op.startswith("ds_read") or op.startswith("ds_bpermute") or op.startswith("ds_permute") or op.startswith("ds_swizzle"):
                self.wr = R(0)
                self.rd = allr(1)
            else:
                self.rd = allr(0)
        elif op.startswith("buffer_") or op.startswith("global_"):
            self.kind = "vmem"
            if "lds" in mods or "_lds_" in op:
                self.lds = True
                self.rd = allr(0) | {("x", "m0")}
            elif "_load_" in op:
                self.wr = R(0)
                self.rd = allr(1)
            elif "atomic" in op:
                self.rd = allr(0)
                if "sc0" in mods or "glc" in mods:
                    self.wr = R(0)
            else:
                self.rd = allr(0)
                if "dwordx4" in op or "dwordx3" in op:
                    self.widestore = True
                    if op.startswith("buffer_"):
                        self.d = R(0)
                    else:
                        self.d = R(1)
        elif op.startswith("s_"):
            self.kind = "salu"
            if op == "s_nop":
                self.nstates = int(ops[0]) + 1
            elif op in ("s_branch",) or op.startswith("s_cbranch"):
                self.target = ops[0]
                if "vcc" in op:
                    self.rd = {("x", "vcc")}
                if "exec" in op:
                    self.rd = {("x", "exec")}
            elif op.startswith("s_cmp") or op in ("s_waitcnt", "s_barrier", "s_endpgm", "s_setprio", "s_sleep"):
                self.rd = allr(0) if op.startswith("s_cmp") else set()
            elif op.startswith("s_load") or op.startswith("s_buffer_load"):
                self.wr = R(0)
                self.rd = allr(1)
            elif op.startswith("s_and_saveexec") or op.startswith("s_or_saveexec"):
                self.wr = R(0) | {("x", "exec")}
                self.rd = allr(1) | {("x", "exec")}
            else:
                self.wr = R(0)
                self.rd = allr(1)
        else:
            raise ValueError("unknown instruction: " + text)

    def is_trans(self):
        return self.kind == "valu" and self.op.startswith(TRANS)


def _isv(s):
    return {r for r in s if r[0] in ("v", "a")}


def _issx(s):
    return {r for r in s if r[0] == "s" or r == ("x", "vcc")}


def need(p, c):
    n = 0
    pv = _isv(p.wr)
    if p.kind == "valu":
        if c.kind == "mfma" and pv & c.rd:
            n = max(n, 2)
        if c.kind == "valu":
            if p.is_trans() and not c.is_trans() and pv & c.rd:
                n = max(n, 1)
            if p.is_trans() and c.is_trans() and pv & c.rd:
                n = max(n, 1)
            if c.op.startswith("v_permlane") and pv & c.rd:
                n = max(n, 2)
            if ("dpp" in c.text or "row_" in c.text or "quad_perm" in c.text) and pv & c.rd:
                n = max(n, 2)
            if (c.op.startswith("v_readfirstlane") or c.op.startswith("v_readlane")) and pv & c.rd:
                n = max(n, 1)
            if _issx(p.wr) & c.rd:
                n = max(n, 2)
        if c.kind == "vmem" and _issx(p.wr) & c.rd:
            n = max(n, 5)
        if c.kind == "salu" and c.target and ("x", "vcc") in p.wr and ("x", "vcc") in c.rd:
            n = max(n, 5)
        if c.kind == "salu" and _issx(p.wr) & c.rd:
            n = max(n, 1)
    if p.kind == "mfma":
        P = p.passes
        if c.kind == "mfma":
            if p.d & c.srcc:
                if p.d == c.srcc and p.passes == c.passes:
                    pass
                else:
                    n = max(n, {4: 6, 8: 10}[P])
            ab = c.rd - c.srcc if not (c.srcc & c.rd - c.srcc) else c.rd
            abr = set(_regs(c.ops[1])) | set(_regs(c.ops[2]))
            if p.d & abr:
                n = max(n, {4: 8, 8: 12}[P])
            if p.d & c.d and not (p.d == c.srcc):
                n = max(n, {4: 6, 8: 10}[P])
        elif c.kind == "valu":
            if p.d & (c.rd | c.wr):
                n = max(n, {4: 8, 8: 12}[P])
            if p.srcc & c.wr:
                n = max(n, {4: 3, 8: 7}[P])
        elif c.kind in ("ds", "vmem"):
            if p.d & (c.rd | c.wr):
                n = max(n, {4: 8, 8: 12}[P])
    if p.kind == "vmem" and p.widestore:
        if c.kind == "valu" and p.d & c.wr:
            n = max(n, 2)
        elif c.kind in ("ds", "vmem", "mfma") and p.d & c.wr:
            n = max(n, 1)
    if p.kind == "salu" and ("x", "m0") in p.wr and c.kind == "vmem" and c.lds:
        n = max(n, 1)
    if p.kind == "salu" and ("x", "exec") in p.wr and c.kind == "mfma":
        n = max(n, 4)
    return n


MAXW = 12


class Kernel:
    def __init__(self, name):
        self.name = name
        self.ins = []
        self._lab = 0

    def __call__(self, text):
        for line in text.split("\n"):
            line = line.strip()
            if line:
                self.ins.append(Ins(line))

    def label(self, base):
        self._lab += 1
        return "%s_%s_%d" % (self.name[:6].strip("_"), base, self._lab)

    def _preds(self):
        ins = self.ins
        labels = {x.label: i for i, x in enumerate(ins) if x.kind == "label"}
        preds = [[] for _ in ins]
        for i, x in enumerate(ins):
            if x.target is not None:
                preds[labels[x.target]].append(i)
            fall = not (x.op in ("s_branch", "s_endpgm"))
            if fall and i + 1 < len(ins):
                preds[i + 1].append(i)
        return preds

    def fix_hazards(self):
        total = 0
        start = 0
        while True:
            ins = self.ins
            preds = self._preds()
            inserted = False
            out = []
            for i, c in enumerate(ins):
                pad = 0
                if i < start:
                    out.append(c)
                    continue
                if c.kind in ("valu", "mfma", "ds", "vmem", "salu") and c.op != "s_nop":
                    stack = [(p, 0) for p in preds[i]]
                    seen = {}
                    while stack:
                        j, dist = stack.pop()
                        if dist > MAXW:
                            continue
                        if j in seen and seen[j] <= dist:
                            continue
                        seen[j] = dist
                        p = ins[j]
                        if p.kind not in ("label", "comment"):
                            r = need(p, c)
                            if r > dist:
                                pad = max(pad, r - dist)
                        nd = dist + p.nstates
                        for q in preds[j]:
                            stack.append((q, nd))
                if pad:
                    out.append(Ins("s_nop %d" % (pad - 1)))
                    total += pad
                    inserted = True
                    start = i
                    out.extend(ins[i:])
                    break
                out.append(c)
            self.ins = out
            if not inserted:
                break
        return total

    def text(self):
        o = []
        for x in self.ins:
            if x.kind == "label":
                o.append(x.label + ":")
            else:
                o.append("    " + x.text)
        return "\n".join(o)

    def max_vgpr(self):
        m = 0
        for x in self.ins:
            for r in x.rd | x.wr:
                if r[0] == "v":
                    m = max(m, r[1] + 1)
        return m

    def max_sgpr(self):
        m = 0
        for x in self.ins:
            for r in x.rd | x.wr:
                if r[0] == "s":
                    m = max(m, r[1] + 1)
        return m
```

```python
import sys
from asmlib import Kernel

NAME = "concat_heads__sliding_local_dilated__mha_block__prompt"

WS_KV = 0
WS_Q = 4 << 20
WS_OA = 6 << 20
WS_OB = 8 << 20
WS_USED = 10 << 20

QSCALE = 0x3EB8AA3B
NINF = 0xFF800000


def vr(a, n=1):
    return "v%d" % a if n == 1 else "v[%d:%d]" % (a, a + n - 1)


def sr(a, n=1):
    return "s%d" % a if n == 1 else "s[%d:%d]" % (a, a + n - 1)


def srd(k, s, ptr, size):
    k("s_mov_b32 s%d, s%d" % (s, ptr))
    k("s_mov_b32 s%d, s%d" % (s + 1, ptr + 1))
    k("s_mov_b32 s%d, 0x%x" % (s + 2, size))
    k("s_mov_b32 s%d, 0x00020000" % (s + 3))


def gen_k2(opt):
    k = Kernel("k2_attn_kernel")
    S = [16, 32]
    C = 48
    O = 64
    Q = 80
    KF = [84, 88]
    VF = [92, 100]
    P = 108
    vK, vV, vInc, vL16, vK0, vV0 = 1, 2, 3, 4, 6, 7
    ONES = 131072
    sHead, sQb, sW, sOff, sIt, sSync, sRedo = 12, 13, 14, 15, 16, 17, 18
    END = "k2_end"
    k("s_cmp_ge_u32 s2, 256")
    k("s_cbranch_scc1 " + END)
    k("s_load_dwordx2 s[4:5], s[0:1], 64")
    k("v_lshrrev_b32 v5, 6, v0")
    k("v_and_b32 v8, 63, v0")
    k("s_and_b32 s%d, s2, 31" % sHead)
    k("v_readfirstlane_b32 s%d, v5" % sW)
    k("s_lshr_b32 s%d, s2, 5" % sQb)
    k("v_lshlrev_b32 v%d, 4, v8" % vL16)
    k("v_lshlrev_b32 v5, 4, v0")
    k("v_add_u32 v5, 0x%x, v5" % ONES)
    for r in range(4):
        k("v_mov_b32 v%d, 0x3f803f80" % (12 + r))
    k("ds_write_b128 v5, v[12:15]")
    k("s_lshl_b32 s20, s%d, 16" % sHead)
    k("s_lshl_b32 s21, s%d, 3" % sQb)
    k("s_add_u32 s21, s21, s%d" % sW)
    k("s_lshl_b32 s22, s21, 10")
    k("s_add_u32 s22, s22, s20")
    k("s_add_u32 s22, s22, 0x%x" % WS_Q)
    k("s_lshl_b32 s23, s%d, 10" % sW)
    k("s_lshl_b32 s%d, s%d, 17" % (sOff, sHead))
    k("s_add_u32 s%d, s%d, s23" % (sOff, sOff))
    k("s_mov_b32 m0, s23")
    k("s_waitcnt lgkmcnt(0)")
    srd(k, 8, 4, WS_USED)
    k("buffer_load_dwordx4 %s, v%d, s[8:11], s22 offen" % (vr(Q, 4), vL16))
    for i in range(16):
        k("buffer_load_dwordx4 v%d, s[8:11], s%d offen lds" % (vL16, sOff))
        if i < 15:
            k("s_add_u32 m0, m0, 8192")
            k("s_add_u32 s%d, s%d, 8192" % (sOff, sOff))
    k("v_and_b32 v9, 15, v8")
    k("v_lshlrev_b32 v9, 4, v9")
    k("v_lshrrev_b32 v10, 5, v8")
    k("v_lshlrev_b32 v10, 8, v10")
    k("v_add_u32 v10, v10, v9")
    k("v_add_u32 v10, 3072, v10")
    k("v_add_u32 v9, 0x%x, v9" % ONES)
    k("v_and_b32 v11, 16, v8")
    k("v_cmp_eq_u32 vcc, 0, v11")
    k("v_mov_b32 v12, 0")
    k("v_mov_b32 v13, 8192")
    k("v_cndmask_b32 v%d, v9, v10, vcc" % vV0)
    k("v_cndmask_b32 v%d, v12, v13, vcc" % vInc)
    k("v_mov_b32 v%d, v%d" % (vK0, vL16))
    k("s_mov_b32 s%d, 0" % sRedo)
    k("s_mov_b32 s%d, 3" % sSync)
    k("s_lshl_b32 s24, s21, 15")
    k("s_lshl_b32 s25, s%d, 10" % sHead)
    k("s_add_u32 s24, s24, s25")
    k("s_add_u32 s24, s24, 0x%x" % WS_OB)
    k("s_mov_b32 s26, 0x5f800000")
    k("s_waitcnt vmcnt(15)")
    k("s_barrier")
    k("ds_read_b128 %s, v%d" % (vr(KF[0], 4), vK0))
    k("s_waitcnt lgkmcnt(0)")
    k("v_mfma_f32_32x32x16_bf16 %s, %s, %s, 0" % (vr(S[0], 16), vr(KF[0], 4), vr(Q, 4)))
    k("v_max3_f32 v5, v%d, v%d, v%d" % (S[0], S[0] + 1, S[0] + 2))
    for j in range(3, 15, 2):
        k("v_max3_f32 v5, v5, v%d, v%d" % (S[0] + j, S[0] + j + 1))
    k("v_max_f32 v5, v5, v%d" % (S[0] + 15))
    PRO2 = "k2_pro2"
    k(PRO2 + ":")
    k("v_mov_b32 v9, v5")
    k("v_permlane32_swap_b32 v5, v9")
    k("v_max_f32 v5, v5, v9")
    k("v_mov_b32 v%d, v%d" % (vK, vK0))
    k("v_mov_b32 v%d, v%d" % (vV, vV0))
    k("v_lshrrev_b32 v9, 2, v%d" % vInc)
    k("v_sub_u32 v9, v%d, v9" % vV0)
    k("ds_read_b128 %s, v%d" % (vr(KF[0], 4), vK))
    k("ds_read_b128 %s, v%d offset:2048" % (vr(KF[1], 4), vK))
    k("ds_read_b128 %s, v9" % vr(VF[0], 4))
    k("ds_read_b128 %s, v9 offset:512" % vr(VF[0] + 4, 4))
    for r in range(16):
        k("v_sub_f32 v%d, 0, v5" % (C + r))
    for r in range(16):
        k("v_mov_b32 v%d, 0" % (O + r))
    for r in range(4):
        k("v_mov_b32 v%d, 0" % (P + 4 + r))
        k("v_mov_b32 v%d, 0" % (VF[1] + 4 + r))
    k("s_mov_b32 s%d, 0" % sIt)
    k("s_waitcnt lgkmcnt(0)")
    k("v_mfma_f32_32x32x16_bf16 %s, %s, %s, %s" % (vr(S[0], 16), vr(KF[0], 4), vr(Q, 4), vr(C, 16)))
    LOOP, BACK, SYNC = "k2_loop", "k2_back", "k2_sync"
    k(LOOP + ":")
    k("s_cmp_lt_u32 s%d, s%d" % (sIt, sSync))
    k("s_cbranch_scc1 " + SYNC)
    k(BACK + ":")
    for u in range(4):
        SC, SN = S[u & 1], S[(u + 1) & 1]
        KN, KW = KF[(u + 1) & 1], KF[u & 1]
        VC, VN = VF[u & 1], VF[(u + 1) & 1]
        e = lambda r: k("v_exp_f32 v%d, v%d" % (SC + r, SC + r))
        c = lambda j: k("v_cvt_pk_bf16_f32 v%d, v%d, v%d" % (P + j, SC + 2 * j, SC + 2 * j + 1))
        k("s_waitcnt lgkmcnt(0)")
        k("v_mfma_f32_32x32x16_bf16 %s, %s, %s, %s" % (vr(SN, 16), vr(KN, 4), vr(Q, 4), vr(C, 16)))
        k("ds_read_b128 %s, v%d offset:%d" % (vr(KW, 4), vK, (u + 2) * 2048))
        k("ds_read_b128 %s, v%d offset:%d" % (vr(VN, 4), vV, u * 2048))
        for r in range(0, 4):
            e(r)
        k("v_mfma_f32_32x32x16_bf16 %s, %s, %s, %s" % (vr(O, 16), vr(VN + 4, 4), vr(P + 4, 4), vr(O, 16)))
        k("ds_read_b128 %s, v%d offset:%d" % (vr(VN + 4, 4), vV, u * 2048 + 512))
        for r in range(4, 8):
            e(r)
        e(8)
        for j in range(4):
            c(j)
        e(9)
        e(10)
        k("v_mfma_f32_32x32x16_bf16 %s, %s, %s, %s" % (vr(O, 16), vr(VC, 4), vr(P, 4), vr(O, 16)))
        if u == 3:
            k("v_add_u32 v%d, 8192, v%d" % (vK, vK))
            k("v_add_u32 v%d, v%d, v%d" % (vV, vV, vInc))
        for r in range(11, 16):
            e(r)
        if u == 3:
            k("s_add_u32 s%d, s%d, 1" % (sIt, sIt))
            k("s_cmp_lt_u32 s%d, 16" % sIt)
        for j in range(4, 8):
            c(j)
    k("s_cbranch_scc1 " + LOOP)
    k("v_mfma_f32_32x32x16_bf16 %s, %s, %s, %s" % (vr(O, 16), vr(VF[1] + 4, 4), vr(P + 4, 4), vr(O, 16)))
    k("s_waitcnt lgkmcnt(0)")
    k("v_rcp_f32 v9, v%d" % (O + 8))
    k("v_mov_b32 v10, 0")
    for j in range(8):
        k("v_fma_f32 v10, v%d, 0, v10" % (O + j))
    k("v_cmp_gt_f32 vcc, s26, v%d" % (O + 8))
    k("v_cmp_eq_f32 s[28:29], 0, v10")
    DONE, MAXP = "k2_done", "k2_maxpass"
    k("s_and_b64 vcc, vcc, s[28:29]")
    k("s_cmp_eq_u64 vcc, -1")
    k("s_cbranch_scc0 " + MAXP)
    k(DONE + ":")
    for j in range(8):
        k("v_mul_f32 v%d, v%d, v9" % (O + j, O + j))
    for j in range(4):
        k("v_cvt_pk_bf16_f32 v%d, v%d, v%d" % (P + j, O + 2 * j, O + 2 * j + 1))
    k("buffer_store_dwordx4 %s, v%d, s[8:11], s24 offen" % (vr(P, 4), vL16))
    k("s_endpgm")
    k(SYNC + ":")
    k("s_cmp_eq_u32 s%d, 0" % sIt)
    k("s_cbranch_scc1 k2_sync0")
    k("s_cmp_eq_u32 s%d, 1" % sIt)
    k("s_cbranch_scc1 k2_sync1")
    k("s_waitcnt vmcnt(0)")
    k("s_barrier")
    k("s_branch " + BACK)
    k("k2_sync0:")
    k("s_waitcnt vmcnt(14)")
    k("s_barrier")
    k("s_branch " + BACK)
    k("k2_sync1:")
    k("s_waitcnt vmcnt(8)")
    k("s_barrier")
    k("s_branch " + BACK)
    k(MAXP + ":")
    k("s_cmp_eq_u32 s%d, 1" % sRedo)
    k("s_cbranch_scc1 " + DONE)
    k("s_mov_b32 s%d, 1" % sRedo)
    k("s_mov_b32 s%d, 0" % sSync)
    k("v_mov_b32 v5, 0x%x" % NINF)
    k("v_mov_b32 v%d, v%d" % (vK, vK0))
    k("s_mov_b32 s%d, 0" % sIt)
    k("k2_maxloop:")
    k("ds_read_b128 %s, v%d" % (vr(KF[0], 4), vK))
    k("v_add_u32 v%d, 2048, v%d" % (vK, vK))
    k("s_add_u32 s%d, s%d, 1" % (sIt, sIt))
    k("s_cmp_lt_u32 s%d, 64" % sIt)
    k("s_waitcnt lgkmcnt(0)")
    k("v_mfma_f32_32x32x16_bf16 %s, %s, %s, 0" % (vr(S[0], 16), vr(KF[0], 4), vr(Q, 4)))
    for j in range(0, 16, 2):
        k("v_max3_f32 v5, v5, v%d, v%d" % (S[0] + j, S[0] + j + 1))
    k("s_cbranch_scc1 k2_maxloop")
    k("s_branch " + PRO2)
    k(END + ":")
    k("s_endpgm")
    return k, 139264, (256, 512)


K1_BUF = 43008
K1_WOFF = 18432


def gen_k1(opt):
    k = Kernel("k1_qkv_kernel")
    accQ = lambda t: 0 + 4 * (t - 1)
    accK = lambda t: 32 + 4 * t
    accV = lambda t: 68 + 4 * t
    XF = [104, 140]
    WF = [176, 188]
    vXa, vXb, vW = 200, 201, 202
    vXa0, vXb0, vW0 = 203, 204, 205
    vL = 206
    vL16 = 207
    T = 208
    sBr, sRb, sHg, sWv, sJ = 12, 13, 14, 15, 16
    sBuf, sS = 17, 18
    END = "k1_end"
    k("s_cmp_ge_u32 s2, 256")
    k("s_cbranch_scc1 " + END)
    k("s_and_b32 s20, s2, 7")
    k("s_lshr_b32 s21, s2, 3")
    k("s_lshr_b32 s%d, s20, 2" % sBr)
    k("s_mul_i32 s22, s%d, 24" % sBr)
    k("s_add_u32 s4, s0, s22")
    k("s_addc_u32 s5, s1, 0")
    k("s_load_dwordx4 s[24:27], s[4:5], 0")
    k("s_load_dwordx2 s[28:29], s[0:1], 64")
    k("v_lshrrev_b32 v%d, 6, v0" % T)
    k("v_and_b32 v%d, 63, v0" % vL)
    k("s_and_b32 s22, s20, 1")
    k("v_readfirstlane_b32 s%d, v%d" % (sWv, T))
    k("s_lshl_b32 s22, s22, 3")
    k("s_and_b32 s23, s21, 7")
    k("s_add_u32 s%d, s22, s23" % sRb)
    k("s_lshr_b32 s22, s20, 1")
    k("s_and_b32 s22, s22, 1")
    k("s_lshl_b32 s22, s22, 2")
    k("s_lshr_b32 s23, s21, 3")
    k("s_add_u32 s%d, s22, s23" % sHg)
    k("v_lshlrev_b32 v%d, 4, v%d" % (vL16, vL))
    k("s_cmp_ge_u32 s%d, 4" % sWv)
    k("s_cbranch_scc1 k1_loader")

    k("v_and_b32 v%d, 15, v%d" % (T, vL))
    k("v_lshrrev_b32 v%d, 4, v%d" % (T + 1, vL))
    k("v_lshrrev_b32 v%d, 1, v%d" % (T + 2, T))
    k("v_xor_b32 v%d, v%d, v%d" % (T + 2, T + 2, T + 1))
    k("v_lshlrev_b32 v%d, 4, v%d" % (T + 2, T + 2))
    k("v_lshl_add_u32 v%d, v%d, 7, v%d" % (vXa0, T, T + 2))
    k("v_xor_b32 v%d, 64, v%d" % (vXb0, vXa0))
    k("v_bfe_u32 v%d, v%d, 2, 2" % (T + 2, vL))
    k("v_lshl_add_u32 v%d, v%d, 3, v%d" % (T + 3, T + 1, T + 2))
    k("v_lshlrev_b32 v%d, 7, v%d" % (T + 3, T + 3))
    k("v_lshrrev_b32 v%d, 1, v%d" % (T + 2, T + 2))
    k("v_and_b32 v%d, 1, v%d" % (T + 4, T + 1))
    k("v_lshl_add_u32 v%d, v%d, 1, v%d" % (T + 2, T + 4, T + 2))
    k("v_xor_b32 v%d, s%d, v%d" % (T + 2, sWv, T + 2))
    k("v_lshl_add_u32 v%d, v%d, 5, v%d" % (T + 3, T + 2, T + 3))
    k("v_and_b32 v%d, 3, v%d" % (T + 2, vL))
    k("v_lshl_add_u32 v%d, v%d, 3, v%d" % (vW0, T + 2, T + 3))
    k("v_add_u32 v%d, %d, v%d" % (vW0, K1_WOFF, vW0))
    for r in range(104):
        k("v_mov_b32 v%d, 0" % r)
    k("v_mov_b32 v%d, v%d" % (vXa, vXa0))
    k("v_mov_b32 v%d, v%d" % (vXb, vXb0))
    k("v_mov_b32 v%d, v%d" % (vW, vW0))
    k("s_mov_b32 s%d, 0" % sBuf)
    k("s_mov_b32 s%d, 0" % sS)
    k("s_waitcnt lgkmcnt(0)")
    k("s_lshl_b32 s30, s%d, 2" % sHg)
    k("s_add_u32 s30, s30, s%d" % sWv)
    srd(k, 8, 28, WS_USED)
    k("s_cmp_eq_u32 s%d, 0" % sBr)
    k("s_cbranch_scc1 k1_compA")

    def reads(setn, kk, tiles):
        out = []
        va = vXa if kk == 0 else vXb
        for sec in range(3):
            for u in range(2):
                out.append("ds_read_b64_tr_b16 %s, v%d offset:%d" % (
                    vr(WF[setn] + 4 * sec + 2 * u, 2), vW, sec * 8192 + kk * 4096 + u * 512))
        for t in tiles:
            out.append("ds_read_b128 %s, v%d offset:%d" % (vr(XF[setn] + 4 * t, 4), va, t * 2048))
        return out

    def mfmas(setn, tiles):
        out = []
        for t in tiles:
            x = vr(XF[setn] + 4 * t, 4)
            if t >= 1:
                out.append("v_mfma_f32_16x16x32_bf16 %s, %s, %s, %s" % (
                    vr(accQ(t), 4), vr(WF[setn], 4), x, vr(accQ(t), 4)))
            out.append("v_mfma_f32_16x16x32_bf16 %s, %s, %s, %s" % (
                vr(accK(t), 4), vr(WF[setn] + 4, 4), x, vr(accK(t), 4)))
            out.append("v_mfma_f32_16x16x32_bf16 %s, %s, %s, %s" % (
                vr(accV(t), 4), x, vr(WF[setn] + 8, 4), vr(accV(t), 4)))
        return out

    def interleave(ms, rs):
        for i, m in enumerate(ms):
            k(m)
            if i < len(rs):
                k(rs[i])
        for r in rs[len(ms):]:
            k(r)

    def mainloop(tag, tiles):
        k("s_barrier")
        for r in reads(0, 0, tiles):
            k(r)
        L = "k1_loop" + tag
        k(L + ":")
        k("s_waitcnt lgkmcnt(0)")
        interleave(mfmas(0, tiles), reads(1, 1, tiles))
        k("s_add_u32 s%d, s%d, %d" % (sBuf, sBuf, K1_BUF))
        k("s_cmp_eq_u32 s%d, %d" % (sBuf, 3 * K1_BUF))
        k("s_cselect_b32 s%d, 0, s%d" % (sBuf, sBuf))
        k("s_add_u32 s%d, s%d, 1" % (sS, sS))
        k("s_cmp_eq_u32 s%d, 8" % sS)
        k("s_waitcnt lgkmcnt(0)")
        k("s_cbranch_scc1 k1_nobar" + tag)
        k("s_barrier")
        k("k1_nobar" + tag + ":")
        k("v_add_u32 v%d, s%d, v%d" % (vXa, sBuf, vXa0))
        k("v_add_u32 v%d, s%d, v%d" % (vW, sBuf, vW0))
        interleave(mfmas(1, tiles), reads(0, 0, tiles))
        k("v_add_u32 v%d, s%d, v%d" % (vXb, sBuf, vXb0))
        k("s_cmp_lt_u32 s%d, 8" % sS)
        k("s_cbranch_scc1 " + L)
        k("s_waitcnt lgkmcnt(0)")

    mainloop("B", list(range(1, 9)))
    k("s_lshl_b32 s31, s%d, 2" % sRb)
    k("s_lshl_b32 s32, s30, 16")
    k("s_lshl_b32 s33, s31, 10")
    k("s_add_u32 s32, s32, s33")
    k("s_add_u32 s32, s32, 0x%x" % WS_Q)
    k("s_lshl_b32 s34, s30, 17")
    k("s_lshl_b32 s33, s31, 11")
    k("s_add_u32 s34, s34, s33")
    k("s_mov_b32 s36, 0x%x" % QSCALE)
    k("s_mov_b32 s37, 0x%x" % QSCALE)
    PK = XF[0]
    for tp in range(4):
        tX, tY = 1 + 2 * tp, 2 + 2 * tp
        for sec, acc in ((1, accK), (2, accV), (0, accQ)):
            p = PK + (tp * 3 + sec) * 4
            if sec == 0:
                for t in (tX, tY):
                    k("v_pk_mul_f32 %s, %s, s[36:37]" % (vr(acc(t), 2), vr(acc(t), 2)))
                    k("v_pk_mul_f32 %s, %s, s[36:37]" % (vr(acc(t) + 2, 2), vr(acc(t) + 2, 2)))
            k("v_cvt_pk_bf16_f32 v%d, v%d, v%d" % (p, acc(tX), acc(tX) + 1))
            k("v_cvt_pk_bf16_f32 v%d, v%d, v%d" % (p + 1, acc(tX) + 2, acc(tX) + 3))
            k("v_cvt_pk_bf16_f32 v%d, v%d, v%d" % (p + 2, acc(tY), acc(tY) + 1))
            k("v_cvt_pk_bf16_f32 v%d, v%d, v%d" % (p + 3, acc(tY) + 2, acc(tY) + 3))
        for sec in (1, 2, 0):
            p = PK + (tp * 3 + sec) * 4
            sw = "v_permlane32_swap_b32" if sec == 2 else "v_permlane16_swap_b32"
            k("%s v%d, v%d" % (sw, p, p + 2))
            k("%s v%d, v%d" % (sw, p + 1, p + 3))
        p = PK + tp * 12
        k("buffer_store_dwordx4 %s, v%d, s[8:11], s34 offen offset:0" % (vr(p + 4, 4), vL16))
        k("buffer_store_dwordx4 %s, v%d, s[8:11], s34 offen offset:1024" % (vr(p + 8, 4), vL16))
        k("buffer_store_dwordx4 %s, v%d, s[8:11], s32 offen" % (vr(p, 4), vL16))
        if tp < 3:
            k("s_add_u32 s34, s34, 2048")
            k("s_add_u32 s32, s32, 1024")
    k("s_endpgm")

    k("k1_compA:")
    mainloop("A", list(range(0, 9)))
    QP, KP, VP = 104, 120, 138
    qp = lambda t: QP + 2 * (t - 1)
    kp = lambda t: KP + 2 * t
    vp = lambda t: VP + 2 * t
    MP, MC, MP0 = 156, 160, 164
    ONE = 168
    k("s_mov_b32 s36, 0x%x" % QSCALE)
    k("s_mov_b32 s37, 0x%x" % QSCALE)
    for t in range(1, 9):
        k("v_pk_mul_f32 %s, %s, s[36:37]" % (vr(accQ(t), 2), vr(accQ(t), 2)))
        k("v_pk_mul_f32 %s, %s, s[36:37]" % (vr(accQ(t) + 2, 2), vr(accQ(t) + 2, 2)))
    for t in range(0, 9):
        k("v_cvt_pk_bf16_f32 v%d, v%d, v%d" % (kp(t), accK(t), accK(t) + 1))
        k("v_cvt_pk_bf16_f32 v%d, v%d, v%d" % (kp(t) + 1, accK(t) + 2, accK(t) + 3))
        k("v_cvt_pk_bf16_f32 v%d, v%d, v%d" % (vp(t), accV(t), accV(t) + 1))
        k("v_cvt_pk_bf16_f32 v%d, v%d, v%d" % (vp(t) + 1, accV(t) + 2, accV(t) + 3))
    for t in range(1, 9):
        k("v_cvt_pk_bf16_f32 v%d, v%d, v%d" % (qp(t), accQ(t), accQ(t) + 1))
        k("v_cvt_pk_bf16_f32 v%d, v%d, v%d" % (qp(t) + 1, accQ(t) + 2, accQ(t) + 3))
    k("v_and_b32 v%d, 15, v%d" % (T, vL))
    k("v_lshrrev_b32 v%d, 4, v%d" % (T + 1, vL))
    k("v_lshlrev_b32 v%d, 2, v%d" % (T + 1, T + 1))
    k("v_sub_u32 v%d, v%d, v%d" % (T + 1, T + 1, T))
    k("v_mov_b32 v%d, 0x%x" % (T + 2, NINF))
    k("v_mov_b32 v%d, 0" % (T + 3))
    k("s_and_b32 s38, s%d, 7" % sRb)
    k("s_cmp_eq_u32 s38, 0")
    k("s_cselect_b32 s39, 0x%x, 0" % NINF)
    for r in range(4):
        k("v_add_u32 v%d, %d, v%d" % (T + 4, r + 7, T + 1))
        k("v_cmp_gt_u32 vcc, 8, v%d" % (T + 4))
        k("v_cndmask_b32 v%d, v%d, v%d, vcc" % (MC + r, T + 2, T + 3))
        k("v_add_u32 v%d, %d, v%d" % (T + 4, r, T + 1))
        k("v_cmp_lt_i32 vcc, 8, v%d" % (T + 4))
        k("v_cndmask_b32 v%d, v%d, v%d, vcc" % (MP + r, T + 2, T + 3))
    for r in range(4):
        k("v_add_f32 v%d, s39, v%d" % (MP0 + r, MP + r))
        k("v_mov_b32 v%d, 0x3f803f80" % (ONE + r))
    for u in range(8):
        t = u + 1
        mp = MP0 if u == 0 else MP
        k("v_mfma_f32_16x16x16_bf16 %s, %s, %s, %s" % (vr(8 * u, 4), vr(kp(t - 1), 2), vr(qp(t), 2), vr(mp, 4)))
        k("v_mfma_f32_16x16x16_bf16 %s, %s, %s, %s" % (vr(8 * u + 4, 4), vr(kp(t), 2), vr(qp(t), 2), vr(MC, 4)))
    M, M2 = 64, 72
    for u in range(8):
        s = 8 * u
        k("v_max3_f32 v%d, v%d, v%d, v%d" % (M + u, s, s + 1, s + 2))
        k("v_max3_f32 v%d, v%d, v%d, v%d" % (M + u, M + u, s + 3, s + 4))
        k("v_max3_f32 v%d, v%d, v%d, v%d" % (M + u, M + u, s + 5, s + 6))
        k("v_max_f32 v%d, v%d, v%d" % (M + u, M + u, s + 7))
    for sw in ("v_permlane32_swap_b32", "v_permlane16_swap_b32"):
        for u in range(8):
            k("v_mov_b32 v%d, v%d" % (M2 + u, M + u))
        for u in range(8):
            k("%s v%d, v%d" % (sw, M + u, M2 + u))
        for u in range(8):
            k("v_max_f32 v%d, v%d, v%d" % (M + u, M + u, M2 + u))
    PP = 172
    PP = 72
    for u in range(8):
        s = 8 * u
        for r in range(8):
            k("v_sub_f32 v%d, v%d, v%d" % (s + r, s + r, M + u))
        for r in range(8):
            k("v_exp_f32 v%d, v%d" % (s + r, s + r))
        for j in range(4):
            k("v_cvt_pk_bf16_f32 v%d, v%d, v%d" % (PP + 4 * u + j, s + 2 * j, s + 2 * j + 1))
    for u in range(8):
        t = u + 1
        k("v_mfma_f32_16x16x32_bf16 %s, %s, %s, 0" % (vr(8 * u, 4), vr(vp(t - 1), 4), vr(PP + 4 * u, 4)))
        k("v_mfma_f32_16x16x32_bf16 %s, %s, %s, 0" % (vr(8 * u + 4, 4), vr(ONE, 4), vr(PP + 4 * u, 4)))
    for u in range(8):
        k("v_rcp_f32 v%d, v%d" % (M + u, 8 * u + 4))
    OPK = 104
    for u in range(8):
        for r in range(4):
            k("v_mul_f32 v%d, v%d, v%d" % (8 * u + r, 8 * u + r, M + u))
        k("v_cvt_pk_bf16_f32 v%d, v%d, v%d" % (OPK + 2 * u, 8 * u, 8 * u + 1))
        k("v_cvt_pk_bf16_f32 v%d, v%d, v%d" % (OPK + 2 * u + 1, 8 * u + 2, 8 * u + 3))
    k("s_lshl_b32 s31, s%d, 17" % sRb)
    k("s_lshl_b32 s32, s30, 10")
    k("s_add_u32 s32, s32, s31")
    k("s_add_u32 s32, s32, 0x%x" % WS_OA)
    for tp in range(4):
        p = OPK + 4 * tp
        k("v_permlane16_swap_b32 v%d, v%d" % (p, p + 2))
        k("v_permlane16_swap_b32 v%d, v%d" % (p + 1, p + 3))
    for tp in range(4):
        p = OPK + 4 * tp
        k("buffer_store_dwordx4 %s, v%d, s[8:11], s32 offen" % (vr(p, 4), vL16))
        if tp < 3:
            k("s_add_u32 s32, s32, 32768")
    k("s_endpgm")

    k("k1_loader:")
    k("s_sub_u32 s%d, s%d, 4" % (sJ, sWv))
    vxe, vxo, vwe, vwo, vh = 1, 2, 3, 4, 5
    k("v_lshrrev_b32 v10, 3, v%d" % vL)
    k("v_and_b32 v11, 7, v%d" % vL)
    k("v_lshrrev_b32 v12, 4, v%d" % vL)
    k("v_xor_b32 v11, v11, v12")
    k("v_lshlrev_b32 v11, 4, v11")
    k("s_sub_u32 s40, 11, s%d" % sBr)
    k("v_lshlrev_b32 v13, s40, v10")
    k("v_add_u32 v%d, v13, v11" % vxe)
    k("v_xor_b32 v%d, 64, v%d" % (vxo, vxe))
    k("v_bfe_u32 v13, v%d, 1, 2" % vL)
    k("v_bfe_u32 v14, v%d, 4, 1" % vL)
    k("v_xor_b32 v13, v13, v14")
    k("v_lshlrev_b32 v13, 5, v13")
    k("v_and_b32 v14, 1, v%d" % vL)
    k("v_lshl_add_u32 v13, v14, 4, v13")
    k("v_mul_u32_u24 v14, 3072, v10")
    k("v_add_u32 v%d, v13, v14" % vwe)
    k("v_xor_b32 v%d, 64, v%d" % (vwo, vwe))
    k("s_and_b32 s41, s%d, 1" % sJ)
    k("s_and_b32 s38, s%d, 7" % sRb)
    k("s_lshl_b32 s42, s38, 7")
    k("s_lshl_b32 s43, s41, 3")
    k("s_add_u32 s43, s43, s42")
    k("s_sub_u32 s43, s43, 16")
    k("v_add_u32 v15, s43, v10")
    k("v_max_i32 v15, 0, v15")
    k("v_lshlrev_b32 v15, 11, v15")
    k("s_lshl_b32 s44, s41, 6")
    k("v_xor_b32 v14, s44, v11")
    k("v_add_u32 v%d, v15, v14" % vh)
    k("s_lshr_b32 s45, s%d, 3" % sRb)
    k("s_lshl_b32 s45, s45, 10")
    k("s_lshl_b32 s46, s%d, 17" % sRb)
    k("s_lshl_b32 s47, s38, 18")
    k("s_add_u32 s47, s47, s45")
    k("s_cmp_eq_u32 s%d, 0" % sBr)
    k("s_cselect_b32 s46, s47, s46")
    k("s_add_u32 s47, s40, 5")
    k("s_lshl_b32 s47, s%d, s47" % sJ)
    k("s_add_u32 s46, s46, s47")
    k("s_add_u32 s47, s40, 3")
    k("s_lshl_b32 s47, 1, s47")
    k("s_mul_i32 s48, s%d, %d" % (sJ, 16 * 3072))
    k("s_lshl_b32 s49, s%d, 7" % sHg)
    k("s_add_u32 s48, s48, s49")
    k("s_lshl_b32 s50, s%d, 12" % sJ)
    k("s_add_u32 s50, s50, 2048")
    k("s_lshl_b32 s51, s%d, 11" % sJ)
    k("s_add_u32 s51, s51, %d" % K1_WOFF)
    k("s_lshl_b32 s52, s41, 10")
    k("s_mov_b32 s53, s45")
    k("s_waitcnt lgkmcnt(0)")
    srd(k, 4, 24, 2048 * 1024)
    srd(k, 8, 26, 512 * 3072)
    k("s_mov_b32 s%d, 0" % sBuf)

    def issue_stage(halo):
        k("s_add_u32 m0, s%d, s50" % sBuf)
        k("s_mov_b32 s54, s46")
        for q in range(4):
            k("buffer_load_dwordx4 v%d, s[4:7], s54 offen lds" % (vxo if q & 1 else vxe))
            if q < 3:
                k("s_add_u32 m0, m0, 1024")
                k("s_add_u32 s54, s54, s47")
        if halo:
            k("s_add_u32 m0, s%d, s52" % sBuf)
            k("s_add_u32 s46, s46, 128")
            k("buffer_load_dwordx4 v%d, s[4:7], s53 offen lds" % vh)
            k("s_add_u32 s53, s53, 128")
        else:
            k("s_add_u32 s46, s46, 128")
        k("s_add_u32 m0, s%d, s51" % sBuf)
        k("s_mov_b32 s54, s48")
        for sec in range(3):
            k("buffer_load_dwordx4 v%d, s[8:11], s54 offen lds" % vwe)
            k("s_add_u32 m0, m0, 1024")
            k("s_add_u32 s54, s54, %d" % (8 * 3072))
            k("buffer_load_dwordx4 v%d, s[8:11], s54 offen lds" % vwo)
            if sec < 2:
                k("s_add_u32 m0, m0, %d" % (8192 - 1024))
                k("s_add_u32 s54, s54, %d" % ((1024 - 8 * 3072) & 0xFFFFFFFF))
        k("s_add_u32 s48, s48, %d" % (64 * 3072))
        k("s_add_u32 s%d, s%d, %d" % (sBuf, sBuf, K1_BUF))
        k("s_cmp_eq_u32 s%d, %d" % (sBuf, 3 * K1_BUF))
        k("s_cselect_b32 s%d, 0, s%d" % (sBuf, sBuf))

    def loader(tag, halo):
        n = 11 if halo else 10
        for s in range(3):
            issue_stage(halo)
        k("s_waitcnt vmcnt(%d)" % (2 * n))
        k("s_barrier")
        k("s_mov_b32 s%d, 0" % sS)
        L = "k1_ld" + tag
        k(L + ":")
        k("s_waitcnt vmcnt(%d)" % n)
        k("s_barrier")
        issue_stage(halo)
        k("s_add_u32 s%d, s%d, 1" % (sS, sS))
        k("s_cmp_lt_u32 s%d, 5" % sS)
        k("s_cbranch_scc1 " + L)
        k("s_waitcnt vmcnt(%d)" % n)
        k("s_barrier")
        k("s_waitcnt vmcnt(0)")
        k("s_barrier")
        k("s_endpgm")

    k("s_cmp_eq_u32 s%d, 0" % sBr)
    k("s_cbranch_scc1 k1_loadA")
    loader("B", False)
    k("k1_loadA:")
    loader("A", True)
    k(END + ":")
    k("s_endpgm")
    return k, 3 * K1_BUF, (256, 512)


def gen_k3(opt):
    k = Kernel("k3_proj_kernel")
    OF = 0
    ACC = [128, 144]
    WF = 160
    vA = [[192, 193], [194, 195]]
    vL, vL16, vSrc, vOut = 196, 197, 198, 199
    T = 200
    sBr, sRb, sCb, sW = 12, 13, 14, 15
    END = "k3_end"
    k("s_cmp_ge_u32 s2, 256")
    k("s_cbranch_scc1 " + END)
    k("s_and_b32 s20, s2, 7")
    k("s_lshr_b32 s21, s2, 3")
    k("s_lshr_b32 s%d, s20, 2" % sBr)
    k("s_mul_i32 s22, s%d, 24" % sBr)
    k("s_add_u32 s4, s0, s22")
    k("s_addc_u32 s5, s1, 0")
    k("s_load_dwordx2 s[24:25], s[4:5], 16")
    k("s_load_dwordx2 s[26:27], s[0:1], 48")
    k("s_load_dwordx2 s[28:29], s[0:1], 64")
    k("v_lshrrev_b32 v%d, 6, v0" % T)
    k("v_and_b32 v%d, 63, v0" % vL)
    k("s_and_b32 s22, s20, 3")
    k("v_readfirstlane_b32 s%d, v%d" % (sW, T))
    k("s_lshl_b32 s22, s22, 2")
    k("s_and_b32 s23, s21, 3")
    k("s_add_u32 s%d, s22, s23" % sRb)
    k("s_lshr_b32 s%d, s21, 2" % sCb)
    k("v_lshlrev_b32 v%d, 4, v%d" % (vL16, vL))
    k("v_lshrrev_b32 v%d, 3, v%d" % (T, vL))
    k("v_bfe_u32 v%d, v%d, 4, 1" % (T + 1, vL))
    k("v_lshlrev_b32 v%d, 2, v%d" % (T + 1, T + 1))
    k("v_and_b32 v%d, 7, v%d" % (T + 2, vL))
    k("v_xor_b32 v%d, v%d, v%d" % (T + 2, T + 2, T + 1))
    k("v_lshlrev_b32 v%d, 4, v%d" % (T + 2, T + 2))
    k("v_lshl_add_u32 v%d, v%d, 10, v%d" % (vSrc, T, T + 2))
    k("s_lshl_b32 s30, s%d, 2" % sRb)
    k("s_add_u32 s30, s30, s%d" % sW)
    k("s_lshl_b32 s31, s30, 15")
    k("s_lshl_b32 s32, s%d, 21" % sBr)
    k("s_add_u32 s31, s31, s32")
    k("s_add_u32 s31, s31, 0x%x" % WS_OA)
    k("s_lshl_b32 s33, s%d, 13" % sW)
    k("s_lshl_b32 s34, s%d, 7" % sCb)
    k("s_add_u32 s33, s33, s34")
    k("s_lshl_b32 s34, s%d, 10" % sW)
    k("s_mov_b32 m0, s34")
    k("s_waitcnt lgkmcnt(0)")
    srd(k, 4, 24, 512 * 1024)
    srd(k, 8, 28, WS_USED)
    srd(k, 16, 26, 2048 * 2048)

    def issue_group(g):
        out = []
        for i in range(4 * g, 4 * g + 4):
            out.append(["buffer_load_dwordx4 v%d, s[4:7], s33 offen lds" % vSrc,
                        "s_add_u32 m0, m0, 4096", "s_add_u32 s33, s33, 32768"])
            for h in (2 * i, 2 * i + 1):
                out.append(["buffer_load_dwordx4 %s, v%d, s[8:11], s31 offen" % (vr(OF + 4 * h, 4), vL16),
                            "s_add_u32 s31, s31, 1024"])
        return out

    for g in range(2):
        for grp in issue_group(g):
            for x in grp:
                k(x)
    k("v_lshrrev_b32 v%d, 5, v%d" % (T, vL))
    k("s_sub_u32 s35, 3, s%d" % sBr)
    k("v_lshlrev_b32 v%d, s35, v%d" % (T, T))
    k("v_bfe_u32 v%d, v%d, 2, 2" % (T + 1, vL))
    k("v_add_u32 v%d, v%d, v%d" % (T, T, T + 1))
    k("v_lshlrev_b32 v%d, 7, v%d" % (T, T))
    k("v_lshrrev_b32 v%d, 1, v%d" % (T + 1, T + 1))
    k("v_lshl_add_u32 v%d, v%d, 6, v%d" % (T, T + 1, T))
    k("v_bfe_u32 v%d, v%d, 4, 1" % (T + 1, vL))
    k("v_lshl_add_u32 v%d, v%d, 5, v%d" % (T, T + 1, T))
    k("v_and_b32 v%d, 3, v%d" % (T + 1, vL))
    k("v_lshl_add_u32 v%d, v%d, 3, v%d" % (vA[0][0], T + 1, T))
    k("v_xor_b32 v%d, 64, v%d" % (vA[1][0], vA[0][0]))
    k("s_lshl_b32 s35, 512, s%d" % sBr)
    k("v_add_u32 v%d, s35, v%d" % (vA[0][1], vA[0][0]))
    k("v_add_u32 v%d, s35, v%d" % (vA[1][1], vA[1][0]))
    k("v_and_b32 v%d, 31, v%d" % (T, vL))
    k("s_and_b32 s36, s30, 31")
    k("s_lshl_b32 s36, s36, 5")
    k("s_lshr_b32 s37, s30, 5")
    k("v_add_u32 v%d, s36, v%d" % (T + 1, T))
    k("v_lshlrev_b32 v%d, 1, v%d" % (T + 1, T + 1))
    k("v_add_u32 v%d, s37, v%d" % (T + 1, T + 1))
    k("s_lshl_b32 s36, s30, 5")
    k("v_add_u32 v%d, s36, v%d" % (T, T))
    k("s_cmp_eq_u32 s%d, 0" % sBr)
    k("s_cselect_b64 vcc, -1, 0")
    k("v_cndmask_b32 v%d, v%d, v%d, vcc" % (T, T, T + 1))
    k("v_lshlrev_b32 v%d, 11, v%d" % (T, T))
    k("v_lshrrev_b32 v%d, 5, v%d" % (T + 1, vL))
    k("v_lshl_add_u32 v%d, v%d, 4, v%d" % (vOut, T + 1, T))
    k("s_lshl_b32 s36, s%d, 10" % sBr)
    k("s_lshl_b32 s37, s%d, 7" % sCb)
    k("s_add_u32 s36, s36, s37")
    for r in range(32):
        k("v_mov_b32 v%d, 0" % (ACC[0] + r))

    def wreads(h):
        b = WF + 8 * (h & 3)
        return ["ds_read_b64_tr_b16 %s, v%d offset:%d" % (vr(b + 4 * nh + 2 * u, 2), vA[nh][u], h * 2048)
                for nh in range(2) for u in range(2)]

    def wm(h):
        b = WF + 8 * (h & 3)
        return ["v_mfma_f32_32x32x16_bf16 %s, %s, %s, %s" % (
            vr(ACC[nh], 16), vr(b + 4 * nh, 4), vr(OF + 4 * h, 4), vr(ACC[nh], 16)) for nh in range(2)]

    for g in range(4):
        later = 12 if g < 3 else 0
        k("s_waitcnt vmcnt(%d)" % later)
        k("s_barrier")
        pend = issue_group(g + 2) if g + 2 < 4 else []
        h0 = 8 * g
        for x in wreads(h0) + wreads(h0 + 1):
            k(x)
        for h in range(h0, h0 + 8):
            nxt = wreads(h + 2) if h + 2 < h0 + 8 else []
            younger = 4 if h + 1 < h0 + 8 else 0
            k("s_waitcnt lgkmcnt(%d)" % younger)
            m = wm(h)
            k(m[0])
            for x in nxt[:2]:
                k(x)
            if pend:
                for x in pend.pop(0):
                    k(x)
            k(m[1])
            for x in nxt[2:]:
                k(x)
            if pend and (h & 1):
                for x in pend.pop(0):
                    k(x)
        while pend:
            for x in pend.pop(0):
                k(x)
    PK = 0
    for nh in range(2):
        for j in range(8):
            k("v_cvt_pk_bf16_f32 v%d, v%d, v%d" % (PK + 8 * nh + j, ACC[nh] + 2 * j, ACC[nh] + 2 * j + 1))
    for nh in range(2):
        for m in range(2):
            p = PK + 8 * nh + 4 * m
            k("v_permlane32_swap_b32 v%d, v%d" % (p, p + 2))
            k("v_permlane32_swap_b32 v%d, v%d" % (p + 1, p + 3))
    for nh in range(2):
        for m in range(2):
            p = PK + 8 * nh + 4 * m
            k("buffer_store_dwordx4 %s, v%d, s[16:19], s36 offen offset:%d" % (vr(p, 4), vOut, nh * 64 + m * 32))
    k(END + ":")
    k("s_endpgm")
    return k, 65536, (256, 256)


HEADER = """; Kernarg layout for this problem (72 bytes, ptrs only, base s[0:1]):
"""


def build(opt=None, which=("k1", "k2", "k3")):
    opt = opt or {}
    gens = {"k1": gen_k1, "k2": gen_k2, "k3": gen_k3}
    ks = []
    for w in which:
        k, lds, (grid, block) = gens[w](opt)
        pads = k.fix_hazards()
        ks.append((k, lds, grid, block))
        print("%s: %d instrs, %d pad states, vgpr %d sgpr %d" % (k.name, len(k.ins), pads, k.max_vgpr(), k.max_sgpr()),
              file=sys.stderr)
    o = [HEADER.rstrip("\n")]
    for k, lds, grid, block in ks:
        o.append("; @launch kernel=%s grid=(%d,1,1) block=(%d,1,1) lds=%d" % (k.name, grid, block, lds))
    o.append('.amdgcn_target "amdgcn-amd-amdhsa--gfx950"')
    o.append(".text")
    for k, lds, grid, block in ks:
        o.append(".globl %s" % k.name)
        o.append(".p2align 8")
        o.append(".type %s,@function" % k.name)
        o.append(k.name + ":")
        o.append(k.text())
    o.append('.section .rodata,"a"')
    for k, lds, grid, block in ks:
        nv = (k.max_vgpr() + 7) // 8 * 8
        o.append(".p2align 6")
        o.append(".amdhsa_kernel %s" % k.name)
        o.append("  .amdhsa_next_free_vgpr %d" % nv)
        o.append("  .amdhsa_next_free_sgpr 102")
        o.append("  .amdhsa_accum_offset %d" % nv)
        o.append("  .amdhsa_group_segment_fixed_size 0")
        o.append("  .amdhsa_kernarg_size 72")
        o.append("  .amdhsa_user_sgpr_count 2")
        o.append("  .amdhsa_user_sgpr_kernarg_segment_ptr 1")
        o.append("  .amdhsa_system_sgpr_workgroup_id_x 1")
        o.append(".end_amdhsa_kernel")
    return "\n".join(o) + "\n"


if __name__ == "__main__":
    out = sys.argv[1] if len(sys.argv) > 1 else "cdna_kernels/%s.s" % NAME
    opt = dict(a.split("=") for a in sys.argv[2:])
    open(out, "w").write(build(opt))
```
